```python
import torch

def _softmax(x, axis=-1):
    return torch.softmax(x, dim=axis)
def _gelu(x):
    return torch.nn.functional.gelu(x, approximate="tanh")
def _silu(x):
    return torch.nn.functional.silu(x)
def _sigmoid(x):
    return torch.sigmoid(x)
def _layernorm(x, axis=-1, eps=1e-5):
    m = x.mean(dim=axis, keepdim=True)
    v = x.var(dim=axis, keepdim=True, unbiased=False)
    return (x - m) / torch.sqrt(v + eps)
def _scatter_add(tgt, idx, src, axis=0):
    return tgt.clone().index_add_(axis, idx, src)
def _segment_sum(src, seg, n):
    out = torch.zeros((n,) + src.shape[1:], dtype=src.dtype)
    return out.index_add_(0, seg, src)
def _pad(x, pw):
    flat = tuple(v for pair in reversed(pw) for v in pair)
    return torch.nn.functional.pad(x, flat)

kernel_name = 'recurrent_scan__sliding_block_cached__glu_gated_geglu__decode'

def setup_inputs():

    _w = (lambda a: (lambda t: t.to(torch.bfloat16) if t.is_floating_point() else t)(torch.as_tensor(a)))
    def _A_setup():
        B, Sq, D = 4, 1, 576
        Hq, Hkv, Sk, Dh = 32, 16, 4096, 128
        assert Hq % Hkv == 0, (Hq, Hkv)
        return {
            "x": _w((lambda *s: torch.randn(*s, dtype=torch.bfloat16) * 0.2)(B, Sq, D)),
            "k_cache": _w((lambda *s: torch.randn(*s, dtype=torch.bfloat16) * 1.6)(B, Hkv, Sk, Dh)),
            "v_cache": _w((lambda *s: torch.randn(*s, dtype=torch.bfloat16) * 1.6)(B, Hkv, Sk, Dh)),
            "wq": _w((lambda *s: torch.randn(*s, dtype=torch.bfloat16) * 1.6)(D, Hq * Dh) * (D ** -0.5)),
            "wo": _w((lambda *s: torch.randn(*s, dtype=torch.bfloat16) * 1.6)(Hq * Dh, D) * ((Hq * Dh) ** -0.5)),
        }
    _A_in = _A_setup()

    def _B_setup():
        B, S, Dm, Df = 4, 1, 576, 4608
        return {
            "x": _w((lambda *s: torch.randn(*s, dtype=torch.bfloat16) * 0.2)(B, S, Dm)),
            "w_gate": _w((lambda *s: torch.randn(*s, dtype=torch.bfloat16) * 0.8)(Dm, Df) * (Dm ** -0.5)),
            "w_up": _w((lambda *s: torch.randn(*s, dtype=torch.bfloat16) * 0.8)(Dm, Df) * (Dm ** -0.5)),
            "w_down": _w((lambda *s: torch.randn(*s, dtype=torch.bfloat16) * 0.8)(Df, Dm) * (Df ** -0.5)),
        }
    _B_in = _B_setup()

    return {
        "A_x": _A_in["x"],
        "A_k_cache": _A_in["k_cache"],
        "A_v_cache": _A_in["v_cache"],
        "A_wq": _A_in["wq"],
        "A_wo": _A_in["wo"],
        "B_x": _B_in["x"],
        "B_w_gate": _B_in["w_gate"],
        "B_w_up": _B_in["w_up"],
        "B_w_down": _B_in["w_down"],
    }

def reference(A_x, A_k_cache, A_v_cache, A_wq, A_wo, B_x, B_w_gate, B_w_up, B_w_down):
    def _A_ref(x, k_cache, v_cache, wq, wo):
        B, Sq, D = x.shape
        Hq, Dh = 32, 128
        Hkv, Sk = k_cache.shape[1], k_cache.shape[2]
        W = min(4096, max(256, Sk // 4))
        rep = Hq // Hkv
        q = (lambda x, *d: x.permute(*d))((x @ wq).reshape(B, Sq, Hq, Dh), 0, 2, 1, 3)
        k = (lambda x, n, axis: torch.repeat_interleave(x, n, dim=axis))(k_cache[:, :, Sk - W:, :], rep, axis=1)
        v = (lambda x, n, axis: torch.repeat_interleave(x, n, dim=axis))(v_cache[:, :, Sk - W:, :], rep, axis=1)
        scores = torch.einsum("bhqd,bhkd->bhqk", q, k) * (Dh ** -0.5)
        p = _softmax(scores, axis=-1)
        o = torch.einsum("bhqk,bhkd->bhqd", p, v)
        return (lambda x, *d: x.permute(*d))(o, 0, 2, 1, 3).reshape(B, Sq, Hq * Dh) @ wo

    def _B_ref(x, w_gate, w_up, w_down):
        g = torch.einsum("bsd,df->bsf", x, w_gate)
        u = torch.einsum("bsd,df->bsf", x, w_up)
        h = _gelu(g) * u
        return torch.einsum("bsf,fd->bsd", h, w_down)

    x = A_x
    xn = _layernorm(x, axis=-1)
    s = _A_ref(xn, A_k_cache, A_v_cache, A_wq, A_wo)
    g = _silu(_B_ref(xn, B_w_gate, B_w_up, B_w_down))
    return x + s * g
```

```python
NAME = "recurrent_scan__sliding_block_cached__glu_gated_geglu__decode"
class A:
    def __init__(self):
        self.l = []
    def __call__(self, s=""):
        for x in s.split("\n"):
            self.l.append(x)
    def text(self):
        return "\n".join(self.l) + "\n"

def header(launch_lines):
    return "".join("; " + x + "\n" for x in launch_lines) + '.amdgcn_target "amdgcn-amd-amdhsa--gfx950"\n.text\n'

def kernel_start(name):
    return f".globl {name}\n.p2align 8\n.type {name},@function\n{name}:\n"

def descriptor(name, vgpr, sgpr=102, accum=None, extra=""):
    if accum is None: accum = min(256, (vgpr + 3) // 4 * 4)
    return f""".amdhsa_kernel {name}
  .amdhsa_next_free_vgpr {vgpr}
  .amdhsa_next_free_sgpr {sgpr}
  .amdhsa_accum_offset {accum}
  .amdhsa_group_segment_fixed_size 0
  .amdhsa_kernarg_size 96
  .amdhsa_user_sgpr_count 2
  .amdhsa_user_sgpr_kernarg_segment_ptr 1
  .amdhsa_system_sgpr_workgroup_id_x 1
{extra}.end_amdhsa_kernel
"""
RODATA = '.section .rodata,"a"\n.p2align 6\n'
```

```python
import re
REG = re.compile(r'\b([vs])(\d+)\b|\b([vs])\[(\d+):(\d+)\]|\b(vcc|exec|m0)\b')
TRANS = ("v_exp_f32", "v_log_f32", "v_rcp_f32", "v_rsq_f32", "v_sqrt_f32", "v_sin_f32", "v_cos_f32")
def regs(op):
    out = []
    for m in REG.finditer(op):
        if m.group(1): out.append(m.group(1) + m.group(2))
        elif m.group(3): out += [m.group(3) + str(i) for i in range(int(m.group(4)), int(m.group(5)) + 1)]
        else: out.append(m.group(6))
    return out
def split_ops(s):
    ops, depth, cur = [], 0, ""
    for ch in s:
        if ch == "[": depth += 1
        if ch == "]": depth -= 1
        if ch == "," and depth == 0: ops.append(cur.strip()); cur = ""
        else: cur += ch
    if cur.strip(): ops.append(cur.strip())
    return ops
class I:
    def __init__(self, text):
        t = text.split(";")[0].strip()
        p = t.split(None, 1)
        self.op = p[0]; ops = split_ops(p[1]) if len(p) > 1 else []
        op = self.op
        self.mfma = op.startswith("v_mfma")
        self.valu = op.startswith("v_") and not self.mfma
        self.vmem = op.startswith(("global_", "buffer_"))
        self.ds = op.startswith("ds_")
        self.dpp = "_dpp" in op
        self.perml = op.startswith("v_permlane")
        self.trans = op.replace("_e32", "").replace("_e64", "") in TRANS
        self.rdlane = op.startswith(("v_readlane", "v_readfirstlane"))
        self.w, self.r = [], []
        self.a = self.b = self.c = []
        self.stdata = []
        R = [regs(o) for o in ops]
        if self.mfma:
            self.w = R[0]; self.a, self.b, self.c = R[1], R[2], R[3]; self.r = self.a + self.b + self.c
        elif self.valu:
            self.w = list(R[0]); self.r = [x for y in R[1:] for x in y]
            if self.perml: self.w += R[1]; self.r += R[0]
            if self.dpp or op.startswith(("v_fmac", "v_writelane")): self.r += R[0]
            if "_co_" in op: self.w += R[1]; self.r = [x for y in R[2:] for x in y]
        elif self.vmem:
            if "load" in op: self.w = R[0]; self.r = [x for y in R[1:] for x in y]
            else:
                self.r = [x for y in R for x in y]
                if "x4" in op or "x3" in op: self.stdata = R[1] if op.startswith("global") else R[0]
        elif self.ds:
            if "read" in op or "permute" in op or "swizzle" in op or "rtn" in op: self.w = R[0]; self.r = [x for y in R[1:] for x in y]
            else: self.r = [x for y in R for x in y]
        else:
            self.r = [x for y in R for x in y]
        self.n = 1
        if op == "s_nop": self.n = int(ops[0], 0) + 1
def need(p, c):
    pw, n = set(p.w), 0
    hit = lambda a, b: bool(set(a) & set(b))
    vw = {x for x in pw if x[0] == "v" and x != "vcc"}; sw = pw - vw
    if p.valu:
        if c.mfma and hit(vw, c.r): n = max(n, 2)
        if (c.dpp or c.perml) and hit(vw, c.r): n = max(n, 2)
        if c.rdlane and hit(vw, c.r): n = max(n, 1)
        if p.trans and (c.valu or c.mfma) and hit(vw, c.r): n = max(n, 1)
        if c.valu and hit(sw, c.r): n = max(n, 4 if c.op.startswith(("v_readlane", "v_writelane")) else 2)
        if c.vmem and hit(sw, c.r): n = max(n, 5)
        if "exec" in sw: n = max(n, 5 if (c.valu or c.mfma) else 0)
    if p.mfma:
        if c.mfma:
            if hit(pw, c.a + c.b): n = max(n, 8)
            if hit(pw, c.c) and list(p.w) != list(c.c): n = max(n, 6)
            if hit(pw, c.w) and list(p.w) != list(c.c): n = max(n, 8)
        elif c.valu or c.vmem or c.ds:
            if hit(pw, c.r + c.w): n = max(n, 8)
            if c.valu and hit(p.c, c.w): n = max(n, 3)
    if p.stdata and hit(p.stdata, c.w): n = max(n, 2)
    return n
def fix(text, report=False):
    out, hist, added = [], [], 0
    for line in text.split("\n"):
        s = line.split(";")[0].strip()
        if not s or s.startswith(".") or s.endswith(":"):
            out.append(line); continue
        c = I(s)
        dist, worst = 0, 0
        for p in reversed(hist[-12:]):
            worst = max(worst, need(p, c) - dist)
            dist += p.n
        if worst > 0:
            out.append(f"s_nop {worst-1}"); hist.append(I(f"s_nop {worst-1}")); added += worst
        out.append(line); hist.append(c)
        if c.op in ("s_branch", "s_endpgm"): hist = []
    if report: print("hazard pass: inserted", added, "wait states")
    return "\n".join(out)
```

```python
import sys, struct
from asmlib import *
import hazard

def f2u(x): return struct.unpack("<I", struct.pack("<f", x))[0]
def vr(a, n=4): return f"v[{a}:{a+n-1}]"

WS_Q, WS_O, WS_ST, WS_F, WS_STAMP = 0x1000, 0x40000, 0x60000, 0x80000, 0x200000
LQ, LST, LO, LR = 0, 512, 1024, 9216
LX, LG, LH, LOB = 0, 4608, 23040, 4608
LDS_BYTES = 23552
SEL_LO, SEL_HI, TAG0, CK0, CK1 = 52, 53, 54, 58, 59
SPIN_MAX = 1 << 19

DEF = dict(Wa=4, P1=27, R=3, Wb=[2]*16 + [4]*8, Wq=8, Wo=[1]*4 + [5]*12, stamps=False, pref=True, emu=True, rot=True, mix=True)

def gen(**kw):
    P = dict(DEF); P.update(kw)
    a = A()
    kn = NAME + "_kernel"
    nst = [0]
    def stamp(i):
        if P["stamps"]: a(f"s_memrealtime s[{64+2*i}:{65+2*i}]")
    uid = [0]
    def lab(s):
        uid[0] += 1
        return f"L_{s}{uid[0]}"
    def consts_perm():
        a(f"s_mov_b32 s{SEL_LO}, 0x05040100\ns_mov_b32 s{SEL_HI}, 0x07060302")
    def load_epoch():
        a("s_load_dword s28, s[26:27], 0")
    def nonce():
        a("s_and_b32 s29, s28, 0x7f7f7f7f\ns_add_u32 s29, s29, 0x07050301\ns_and_b32 s28, s28, 0x80808080\ns_xor_b32 s29, s29, s28")
    def consts_tag():
        for r in range(4): a(f"s_mov_b32 s{TAG0+r}, {0x07060500 | r:#x}")
    def consts_chk():
        a(f"s_mov_b32 s{CK0}, 0x0c0c0400\ns_mov_b32 s{CK1}, 0x04000c0c")
    def tag(dst, src, vn):
        for r in range(4): a(f"v_perm_b32 v{dst+r}, v{src+r}, v{vn}, s{TAG0+r}")
    def check(quads, t):
        for n, q in enumerate(quads):
            a(f"v_perm_b32 v{t}, v{q+1}, v{q}, s{CK0}\nv_perm_b32 v{t+1}, v{q+3}, v{q+2}, s{CK1}")
            if len(quads) == 1:
                a(f"v_or_b32 v{t}, v{t}, v{t+1}\nv_cmp_ne_u32 vcc, s29, v{t}")
            elif n == 0:
                a(f"v_bitop3_b32 v{t+2}, v{t}, v{t+1}, s29 bitop3:0x56")
            else:
                a(f"v_bitop3_b32 v{t}, v{t}, v{t+1}, s29 bitop3:0x56\nv_or_b32 v{t+2}, v{t+2}, v{t}")
        if len(quads) > 1: a(f"v_cmp_ne_u32 vcc, 0, v{t+2}")
    def untag(q):
        for r in range(4): a(f"v_and_b32 v{q+r}, 0xffffff00, v{q+r}")
    def poll(loads, quads, t, cnt="s51"):
        L, X = lab("poll"), lab("pollx")
        a(f"s_mov_b32 {cnt}, {SPIN_MAX}\n{L}:")
        for l in loads: a(l)
        a(f"s_sub_u32 {cnt}, {cnt}, 1\ns_waitcnt vmcnt(0)\ns_cbranch_scc1 {X}")
        check(quads, t)
        a(f"s_cbranch_vccnz {L}\n{X}:")
    def perm_pair(D, T, jp):
        out = []
        for e in range(8):
            out.append(f"v_perm_b32 v{T+4*e+jp}, v{D+4*(2*jp+1)+(e>>1)}, v{D+8*jp+(e>>1)}, s{SEL_HI if e & 1 else SEL_LO}")
        return out
    def perm_e(D, T, e):
        return [f"v_perm_b32 v{T+4*e+jp}, v{D+4*(2*jp+1)+(e>>1)}, v{D+8*jp+(e>>1)}, s{SEL_HI if e & 1 else SEL_LO}" for jp in range(4)]
    def mfma(acc, Aop, Bop, first):
        return f"v_mfma_f32_16x16x32_bf16 {vr(acc)}, {vr(Aop)}, {vr(Bop)}, {'0' if first else vr(acc)}"
    def block(D, T, ACC, Aop, first, pre=None):
        for l in perm_e(D, T, 0): a(l)
        for e in range(8):
            if e < 7:
                for l in perm_e(D, T, e + 1): a(l)
            if e == 0 and pre: a(pre)
            a(mfma(ACC + 4 * e, Aop, T + 4 * e, first))
    def fold(out, ACC):
        for r in range(4):
            a(f"v_add_f32_dpp v{out+r}, v{ACC+4*r+2}, v{ACC+4*r} row_ror:8 row_mask:0xf bank_mask:0x3")
        for r in range(4):
            a(f"v_add_f32_dpp v{out+r}, v{ACC+16+4*r}, v{ACC+16+4*r+2} row_ror:8 row_mask:0xf bank_mask:0xc")
    def srd(s, base, off, size):
        a(f"s_add_u32 s{s}, s{base}, {off}\ns_addc_u32 s{s+1}, s{base+1}, 0\ns_mov_b32 s{s+2}, {size}\ns_mov_b32 s{s+3}, 0x20000")
    def blk_voff(dst, stride, t):
        a(f"v_bfe_u32 v{dst}, v0, 3, 1\nv_lshrrev_b32 v{t}, 4, v0\nv_lshl_add_u32 v{dst}, v{dst}, 2, v{t}\nv_mul_u32_u24 v{dst}, {8*stride}, v{dst}\nv_and_b32 v{t}, 7, v0\nv_lshl_add_u32 v{dst}, v{t}, 4, v{dst}")
    def aop_addr(dst, rowbytes, t):
        a(f"v_bfe_u32 v{dst}, v0, 2, 2\nv_mul_u32_u24 v{dst}, {rowbytes}, v{dst}\nv_bfe_u32 v{t}, v0, 1, 1\nv_lshl_add_u32 v{dst}, v{t}, 6, v{dst}\nv_and_b32 v{t}, 48, v0\nv_add_u32 v{dst}, v{dst}, v{t}")
    def out_off(dst, rowbytes, t):
        a(f"v_lshrrev_b32 v{dst}, 4, v0\nv_mul_u32_u24 v{dst}, {rowbytes}, v{dst}\nv_and_b32 v{t}, 7, v0\nv_lshl_add_u32 v{dst}, v{t}, 5, v{dst}\nv_and_b32 v{t}, 8, v0\nv_lshl_add_u32 v{dst}, v{t}, 1, v{dst}")
    def bf16r(dst, src, t):
        a(f"v_cvt_pk_bf16_f32 v{t}, v{src}, v{src}\nv_lshlrev_b32 v{dst}, 16, v{t}")
    END = "s_branch L_end" if P["stamps"] else "s_endpgm"
    LOG2E = f2u(1.4426950408889634)

    a(kernel_start(kn))
    if P["stamps"]:
        for i in range(1, 12): a(f"s_mov_b32 s{64+2*i}, 0")
    stamp(0)
    a("s_cmp_ge_u32 s2, 248\ns_cbranch_scc1 L_exit")
    a("s_load_dwordx16 s[4:19], s[0:1], 0\ns_load_dwordx8 s[20:27], s[0:1], 64")
    a("v_lshrrev_b32 v1, 6, v0\ns_lshr_b32 s30, s2, 3")
    a("s_add_u32 s31, s2, s30\ns_and_b32 s31, s31, 7" if P["mix"] else "s_and_b32 s31, s2, 7")
    a("v_readfirstlane_b32 s3, v1")
    a("s_cmp_ge_u32 s30, 16\ns_cbranch_scc1 L_BC")
    KB, VB, S0, QR, TM = 40, 104, 12, 8, 28
    a("s_cmp_ge_u32 s3, 8\ns_cbranch_scc1 L_Actl")
    a("s_and_b32 s32, s30, 6\ns_lshl_b32 s32, s32, 23\ns_and_b32 s33, s30, 9\ns_lshl_b32 s33, s33, 17\ns_add_u32 s32, s32, s33\ns_lshl_b32 s33, s31, 21\ns_add_u32 s32, s32, s33\ns_add_u32 s32, s32, 0xc0000")
    a("v_lshlrev_b32 v2, 4, v0\nv_and_b32 v1, 0x1c30, v2\nv_bfe_u32 v3, v0, 2, 2\nv_lshl_or_b32 v1, v3, 8, v1\nv_bfe_u32 v3, v0, 4, 2\nv_lshl_or_b32 v1, v3, 6, v1")
    a("s_lshl_b32 s48, s30, 13" if P["rot"] else "s_mov_b32 s48, 0")
    a("s_waitcnt lgkmcnt(0)")
    srd(36, 6, "s32", "0x20000")
    Wa, P1 = P["Wa"], P["P1"]
    b = A(); sa = a; a = b
    a(f"ds_read_b128 {vr(QR)}, v3\ns_waitcnt lgkmcnt(0)")
    def M(s): return f"v_mfma_f32_16x16x32_bf16 {vr(KB+4*s)}, {vr(KB+4*s)}, {vr(QR)}, 0"
    def Sg(g, r):
        return [(f"v_mov_b32_dpp v{S0+s}, v{KB+4*s} quad_perm:[0,0,0,0] row_mask:0xf bank_mask:0xf" if r == 0 else
                 f"v_add_f32_dpp v{S0+s}, v{KB+4*s+r}, v{S0+s} quad_perm:[{r},{r},{r},{r}] row_mask:0xf bank_mask:0xf") for s in range(4*g, 4*g+4)]
    for s in range(8): a(M(s))
    for g in range(4):
        for r in range(4):
            if g < 2: a(M(8 + 4 * g + r))
            for l in Sg(g, r): a(l)
    for half in range(2):
        ps = range(4 * half, 4 * half + 4)
        if P["emu"]:
            for p in ps: a(f"v_cvt_pk_bf16_f32 v{TM+p}, v{S0+2*p}, v{S0+2*p+1}")
            for p in ps: a(f"v_lshlrev_b32 v{S0+2*p}, 16, v{TM+p}\nv_and_b32 v{S0+2*p+1}, 0xffff0000, v{TM+p}")
        for p in ps: a(f"v_pk_mul_f32 {vr(S0+2*p,2)}, {vr(S0+2*p,2)}, s[60:61]")
        if P["emu"]:
            for p in ps: a(f"v_cvt_pk_bf16_f32 v{TM+p}, v{S0+2*p}, v{S0+2*p+1}")
            for p in ps: a(f"v_lshlrev_b32 v{S0+2*p}, 16, v{TM+p}\nv_and_b32 v{S0+2*p+1}, 0xffff0000, v{TM+p}")
    a(f"v_max3_f32 v4, v{S0}, v{S0+1}, v{S0+2}\nv_max3_f32 v5, v{S0+3}, v{S0+4}, v{S0+5}")
    a(f"v_max3_f32 v4, v4, v{S0+6}, v{S0+7}\nv_max3_f32 v5, v5, v{S0+8}, v{S0+9}")
    a(f"v_max3_f32 v4, v4, v{S0+10}, v{S0+11}\nv_max3_f32 v5, v5, v{S0+12}, v{S0+13}")
    a(f"v_max3_f32 v4, v4, v{S0+14}, v{S0+15}\nv_max_f32 v4, v4, v5")
    a("v_mov_b32 v5, v4\nv_permlane16_swap_b32 v4, v5\nv_max_f32 v4, v4, v5\nv_mov_b32 v5, v4\nv_permlane32_swap_b32 v4, v5\nv_max_f32 v4, v4, v5")
    for p in range(8): a(f"v_pk_add_f32 {vr(S0+2*p,2)}, {vr(S0+2*p,2)}, v[4:5] op_sel_hi:[1,0] neg_lo:[0,1] neg_hi:[0,1]")
    for p in range(8): a(f"v_pk_mul_f32 {vr(S0+2*p,2)}, {vr(S0+2*p,2)}, s[62:63]")
    for s in range(16): a(f"v_exp_f32 v{S0+s}, v{S0+s}")
    PB = TM
    for p in range(8): a(f"v_cvt_pk_bf16_f32 v{PB+p}, v{S0+2*p}, v{S0+2*p+1}")
    for st in (8, 4, 2):
        for p in range(0, st, 2): a(f"v_pk_add_f32 {vr(S0+p,2)}, {vr(S0+p,2)}, {vr(S0+p+st,2)}")
    a(f"v_add_f32 v5, v{S0}, v{S0+1}")
    a("v_mov_b32 v6, v5\nv_permlane16_swap_b32 v5, v6\nv_add_f32 v5, v5, v6\nv_mov_b32 v6, v5\nv_permlane32_swap_b32 v5, v6\nv_add_f32 v5, v5, v6")
    a("ds_write_b64 v7, v[4:5]")
    qk_lines = [l for l in b.l if l.strip()]
    a = sa
    nrem = 31 - P1
    per = -(-len(qk_lines) // (nrem + 1))
    for n in range(32):
        if n >= Wa: a(f"s_waitcnt vmcnt({Wa-1})")
        if n == Wa: stamp(1)
        if n == 16 + Wa - 1: stamp(2)
        a(f"buffer_load_dwordx4 {vr(KB+4*n)}, {'v1' if n < 16 else 'v2'}, s[{36 if n < 16 else 40}:{39 if n < 16 else 43}], s48 offen nt")
        if n < 31: a("s_add_u32 s48, s48, 0x2000\ns_and_b32 s48, s48, 0x1e000")
        if n == Wa - 1:
            load_epoch()
            srd(40, 8, "s32", "0x20000")
            consts_perm(); consts_chk()
            a(f"s_mov_b32 s60, {f2u(128 ** -0.5):#x}\ns_mov_b32 s61, s60\ns_mov_b32 s62, {LOG2E:#x}\ns_mov_b32 s63, s62")
            a("v_and_b32 v0, 63, v0")
            a(f"v_and_b32 v3, 0xf0, v1\nv_bfe_u32 v7, v0, 3, 1\nv_lshl_or_b32 v3, v7, 8, v3\ns_lshl_b32 s33, s3, 3\ns_add_u32 s33, s33, {LST}\nv_lshl_add_u32 v7, v7, 6, s33")
            a("s_waitcnt lgkmcnt(0)"); nonce()
        if n == P1:
            assert n - Wa + 1 >= 16
            stamp(3); a("s_barrier"); stamp(4)
        if n >= P1:
            for l in qk_lines[(n - P1) * per:(n - P1 + 1) * per]: a(l)
    a("s_waitcnt lgkmcnt(0)\ns_barrier")
    stamp(5)
    TA, AC = 40, 72
    a("s_waitcnt vmcnt(8)")
    block(VB, TA, AC, PB, True)
    for jp in range(4):
        a(f"s_waitcnt vmcnt({6-2*jp})")
        if jp == 3: stamp(6)
        for l in perm_pair(VB + 32, VB, jp): a(l)
    for e in range(8): a(mfma(AC + 4 * e, PB + 4, VB + 4 * e, False))
    a("s_mov_b32 s34, 0xffff0000\ns_mov_b32 s35, 0xffff0000")
    for r in range(4): a(f"v_cndmask_b32 v{S0+r}, v{AC+4*r}, v{AC+16+4*r}, s[34:35]")
    a(f"ds_write_b128 v2, {vr(S0)} offset:{LO}\ns_waitcnt lgkmcnt(0)\ns_barrier")
    stamp(7)
    a("L_red:\ns_cmp_ge_u32 s30, 9\ns_cbranch_scc1 L_fin")
    a("s_and_b32 s32, s2, 7\ns_mul_i32 s32, s32, 9\ns_add_u32 s32, s32, s30")
    a(f"s_lshl_b32 s33, s32, 6\nv_lshl_add_u32 v6, v0, 1, s33\nv_min_u32 v6, {4608-2}, v6\nglobal_load_ushort v20, v6, s[4:5]")
    a(f"v_lshrrev_b32 v1, 3, v0\nv_mul_u32_u24 v1, 9216, v1\nv_and_b32 v2, 7, v0\nv_lshl_add_u32 v1, v2, 4, v1\ns_mul_i32 s33, s3, {8*9216}\ns_lshl_b32 s34, s32, 7\ns_add_u32 s33, s33, s34\ns_add_u32 s33, s33, {WS_F}\nv_add_u32 v1, s33, v1\nv_add_u32 v3, {72*9216}, v1")
    a(f"v_lshrrev_b32 v4, 4, v0\nv_lshl_add_u32 v4, v2, 2, v4\nv_lshlrev_b32 v4, 2, v4\ns_lshl_b32 s33, s3, 7\nv_add_u32 v4, s33, v4")
    def redq(q):
        untag(q)
        a(f"v_permlane32_swap_b32 v{q}, v{q+2}\nv_permlane32_swap_b32 v{q+1}, v{q+3}\nv_add_f32 v{q}, v{q}, v{q+2}\nv_add_f32 v{q+1}, v{q+1}, v{q+3}")
        a(f"v_permlane16_swap_b32 v{q}, v{q+1}\nv_add_f32 v{q}, v{q}, v{q+1}\nv_add_f32_dpp v{q}, v{q}, v{q} row_ror:8 row_mask:0xf bank_mask:0xf")
    a("s_cmp_ge_u32 s3, 4\ns_cbranch_scc1 L_red1")
    poll([f"global_load_dwordx4 v[8:11], v1, s[26:27] sc1", f"global_load_dwordx4 v[12:15], v3, s[26:27] sc1"], [8, 12], 16)
    redq(12)
    a(f"ds_write_b32 v4, v12 offset:{LR+9*128}\ns_branch L_red2\nL_red1:")
    poll([f"global_load_dwordx4 v[8:11], v1, s[26:27] sc1"], [8], 16)
    a("L_red2:")
    stamp(8)
    redq(8)
    a(f"ds_write_b32 v4, v8 offset:{LR}\nv_and_b32 v5, 31, v0\nv_lshlrev_b32 v5, 2, v5\nv_add_u32 v5, {LR}, v5\ns_waitcnt lgkmcnt(0)\ns_barrier")
    a("s_cmp_lg_u32 s3, 0\ns_cbranch_scc1 L_fin")
    for k in range(4): a(f"ds_read2_b32 {vr(22+2*k,2)}, v5 offset0:{64*k} offset1:{64*k+32}")
    a(f"ds_read_b32 v30, v5 offset:{8*128}\nv_add_u32 v5, {9*128}, v5")
    for k in range(2): a(f"ds_read2_b32 {vr(32+2*k,2)}, v5 offset0:{64*k} offset1:{64*k+32}")
    a(f"v_lshlrev_b32 v20, 16, v20\ns_mov_b32 s33, {f2u(-1.4426950408889634):#x}\ns_waitcnt lgkmcnt(2)")
    a("v_pk_add_f32 v[22:23], v[22:23], v[24:25]\nv_pk_add_f32 v[26:27], v[26:27], v[28:29]\nv_pk_add_f32 v[22:23], v[22:23], v[26:27]\nv_add_f32 v22, v22, v30\nv_add_f32 v22, v22, v23")
    a("s_waitcnt lgkmcnt(0)\nv_pk_add_f32 v[32:33], v[32:33], v[34:35]\nv_add_f32 v23, v32, v33")
    a("v_cvt_pk_bf16_f32 v24, v22, v23\nv_lshlrev_b32 v22, 16, v24\nv_and_b32 v23, 0xffff0000, v24")
    a("v_mul_f32 v24, s33, v22\nv_exp_f32 v24, v24\nv_add_f32 v24, 1.0, v24\nv_rcp_f32 v24, v24\nv_mul_f32 v22, v22, v24")
    bf16r(22, 22, 24)
    a("v_mul_f32 v22, v22, v23")
    bf16r(22, 22, 24)
    a("v_add_f32 v22, v22, v20\nv_cvt_pk_bf16_f32 v22, v22, v22\ns_mov_b32 exec_hi, 0\nglobal_store_short v6, v22, s[22:23]")
    a("s_cmp_lg_u32 s32, 0\ns_cbranch_scc1 L_fin\ns_mov_b64 exec, 1\nv_mov_b32 v1, 0\nv_mov_b32 v2, s29\nglobal_store_dword v1, v2, s[26:27]")
    a("L_fin:"); stamp(9); a(END)
    a("L_Actl:\nv_and_b32 v0, 63, v0\ns_cmp_eq_u32 s3, 8\ns_cbranch_scc1 L_Actl8")
    if P["pref"]:
        a(f"s_getpc_b64 s[32:33]\nL_pc:\ns_sub_u32 s32, s32, L_pc-{kn}\ns_subb_u32 s33, s33, 0\nv_lshlrev_b32 v1, 7, v0\nv_min_u32 v2, L_last-{kn}, v1\nglobal_load_dword v3, v2, s[32:33]\nv_add_u32 v1, 8192, v1\nv_min_u32 v2, L_last-{kn}, v1\nglobal_load_dword v4, v2, s[32:33]")
    a("s_waitcnt lgkmcnt(0)"); a(END)
    a("L_Actl8:\ns_setprio 3\ns_lshr_b32 s32, s30, 3\ns_lshl_b32 s33, s31, 1\ns_add_u32 s32, s32, s33\ns_bfe_u32 s33, s30, 0x20001")
    a(f"s_mul_i32 s34, s32, 12\ns_add_u32 s34, s34, s33\ns_lshl_b32 s34, s34, 10\ns_add_u32 s34, s34, {WS_Q}\nv_lshl_add_u32 v1, v0, 4, s34\nv_add_u32 v2, 4096, v1\nv_add_u32 v3, 8192, v1")
    a("s_waitcnt lgkmcnt(0)"); load_epoch()
    consts_tag(); consts_chk()
    a(f"s_lshl_b32 s34, s32, 3\ns_and_b32 s35, s30, 7\ns_add_u32 s34, s34, s35")
    a(f"s_lshl_b32 s35, s34, 10\ns_add_u32 s35, s35, {WS_O}\nv_lshl_add_u32 v4, v0, 4, s35")
    a(f"s_lshl_b32 s35, s34, 7\ns_add_u32 s35, s35, {WS_ST}\nv_lshrrev_b32 v6, 5, v0\nv_lshl_add_u32 v5, v6, 4, s35\nv_lshlrev_b32 v6, 6, v6\nv_lshlrev_b32 v7, 3, v0\nv_lshlrev_b32 v29, 4, v0")
    a(f"s_mov_b32 s62, {LOG2E:#x}\ns_waitcnt lgkmcnt(0)"); nonce(); a("v_mov_b32 v28, s29")
    if P["R"]:
        L, X = lab("light"), lab("lightx")
        a(f"s_mov_b32 s51, {P['R']-1}\ns_mov_b64 exec, 1\n{L}:\nglobal_load_dwordx4 v[8:11], v1, s[26:27] sc1\ns_sub_u32 s51, s51, 1\ns_waitcnt vmcnt(0)\ns_cbranch_scc1 {X}")
        check([8], 20)
        a(f"s_cbranch_vccnz {L}\n{X}:\ns_mov_b64 exec, -1")
    stamp(1)
    poll([f"global_load_dwordx4 {vr(8+4*t)}, v{1+t}, s[26:27] sc1" for t in range(3)], [8, 12, 16], 20)
    stamp(2)
    for q in (8, 12, 16): untag(q)
    a("v_pk_add_f32 v[8:9], v[8:9], v[12:13]\nv_pk_add_f32 v[10:11], v[10:11], v[14:15]\nv_pk_add_f32 v[8:9], v[8:9], v[16:17]\nv_pk_add_f32 v[10:11], v[10:11], v[18:19]")
    a(f"v_cvt_pk_bf16_f32 v8, v8, v9\nv_cvt_pk_bf16_f32 v9, v10, v11\nds_write_b64 v7, v[8:9] offset:{LQ}\ns_waitcnt lgkmcnt(0)\ns_barrier\ns_barrier")
    for k in range(4): a(f"ds_read_b128 {vr(8+4*k)}, v6 offset:{LST+16*k}")
    a("s_waitcnt lgkmcnt(0)\nv_max3_f32 v24, v8, v10, v12\nv_max3_f32 v25, v14, v16, v18\nv_max3_f32 v24, v24, v20, v22\nv_max_f32 v24, v24, v25")
    for w in range(8): a(f"v_sub_f32 v{8+2*w}, v{8+2*w}, v24")
    for w in range(8): a(f"v_mul_f32 v{8+2*w}, s62, v{8+2*w}")
    for w in range(8): a(f"v_exp_f32 v{8+2*w}, v{8+2*w}")
    a("v_mul_f32 v25, v8, v9")
    for w in range(1, 8): a(f"v_fmac_f32 v25, v{8+2*w}, v{9+2*w}")
    a("v_mov_b32 v26, v24\nv_mov_b32 v27, v25")
    tag(24, 24, 28)
    a("s_mov_b32 exec_lo, 1\ns_mov_b32 exec_hi, 1\nglobal_store_dwordx4 v5, v[24:27], s[26:27] sc1\ns_mov_b64 exec, -1")
    stamp(5)
    a("s_barrier")
    for w in range(8): a(f"ds_read_b128 {vr(32+4*w)}, v29 offset:{LO+1024*w}")
    for w in range(8):
        a(f"s_waitcnt lgkmcnt({7-w})" if not P["stamps"] or w else "s_waitcnt lgkmcnt(0)")
        for h in range(2):
            if w == 0: a(f"v_pk_mul_f32 {vr(32+2*h,2)}, {vr(32+2*h,2)}, {vr(8,2)} op_sel_hi:[1,0]")
            else: a(f"v_pk_fma_f32 {vr(32+2*h,2)}, {vr(32+4*w+2*h,2)}, {vr(8+2*w,2)}, {vr(32+2*h,2)} op_sel_hi:[1,0,1]")
    tag(32, 32, 28)
    a("global_store_dwordx4 v4, v[32:35], s[26:27] sc1")
    stamp(7)
    a("s_branch L_red")
    a("L_BC:\nv_and_b32 v0, 63, v0\ns_cmp_eq_u32 s3, 9\ns_cbranch_scc1 L_LN\ns_cmp_ge_u32 s30, 25\ns_cbranch_scc1 L_C")
    G, U, DN, T, ACC = 40, 72, 104, 136, 8
    a("s_mul_i32 s32, s31, 9\ns_add_u32 s32, s32, s30\ns_sub_u32 s32, s32, 16")
    a(f"s_mul_i32 s48, s3, {64*9216}\ns_lshl_b32 s33, s32, 7\ns_add_u32 s48, s48, s33\ns_mov_b32 s49, s48")
    blk_voff(1, 9216, 2)
    a("s_waitcnt lgkmcnt(0)")
    srd(36, 16, 0, 576 * 9216)
    Wb = P["Wb"]; done = 0
    for n in range(24):
        W = Wb[n]
        if n >= W: a(f"s_waitcnt vmcnt({W-1})")
        landed = max(0, n - W + 1)
        if n < 8: a(f"buffer_load_dwordx4 {vr(G+4*n)}, v1, s[36:39], s48 offen nt" + ("\ns_add_u32 s48, s48, 9216" if n < 7 else ""))
        elif n < 16: a(f"buffer_load_dwordx4 {vr(G+4*n)}, v1, s[40:43], s49 offen nt" + ("\ns_add_u32 s49, s49, 9216" if n < 15 else ""))
        else: a(f"buffer_load_dwordx4 {vr(G+4*n)}, v2, s[44:47], s50 offen offset:{1152*(n&3)} nt" + ("\ns_add_u32 s50, s50, 4608" if n == 19 else ""))
        if n == Wb[0] - 1:
            load_epoch()
            srd(40, 18, 0, 576 * 9216); srd(44, 20, 0, 4608 * 1152)
            a(f"s_mul_i32 s50, s32, {64*1152}\ns_lshl_b32 s33, s3, 7\ns_add_u32 s50, s50, s33")
            blk_voff(2, 1152, 3)
            aop_addr(3, 1152, 4)
            a("v_add_u32 v3, s33, v3")
            consts_perm(); consts_tag()
            a("s_waitcnt lgkmcnt(0)"); nonce()
        if landed >= 8 and done == 0:
            done = 1; stamp(1)
            a(f"s_barrier\nds_read_b128 v[4:7], v3 offset:{LX}")
            block(G, T, ACC, 4, True, pre="s_waitcnt lgkmcnt(0)")
            out_off(3, 256, G + 4)
            a(f"s_lshl_b32 s33, s3, 11\nv_add_u32 v3, s33, v3")
            fold(G, ACC)
            a(f"ds_write_b128 v3, {vr(G)} offset:{LG}")
        if landed >= 16 and done == 1:
            done = 2; stamp(2)
            block(U, T, ACC, 4, True)
            fold(G + 4, ACC)
            a(f"ds_write_b128 v3, {vr(G+4)} offset:{LG+1024}")
    assert done == 2
    aop_addr(3, 128, 4)
    out_off(1, 2304, 4)
    a(f"s_mul_i32 s33, s32, 9216\ns_lshl_b32 s34, s3, 8\ns_add_u32 s33, s33, s34\ns_add_u32 s33, s33, {WS_F}\nv_add_u32 v1, s33, v1\nv_mov_b32 v2, s29")
    a("s_waitcnt lgkmcnt(0)\ns_barrier"); stamp(3)
    a("s_cmp_ge_u32 s3, 4\ns_cbranch_scc1 L_Bh")
    a(f"s_add_u32 s34, s34, {LG}\nv_lshl_add_u32 v4, v0, 2, s34")
    for w in range(9): a(f"ds_read2st64_b32 {vr(G+2*w,2)}, v4 offset0:{8*w} offset1:{8*w+4}")
    a(f"s_lshl_b32 s34, s3, 7\nv_lshl_add_u32 v4, v0, 1, s34\ns_mov_b32 s34, {f2u(0.044715):#x}\ns_mov_b32 s35, {f2u(-2*0.7978845608028654*1.4426950408889634):#x}\ns_waitcnt lgkmcnt(0)")
    for w in range(4): a(f"v_pk_add_f32 {vr(G+2*w,2)}, {vr(G+2*w,2)}, {vr(G+8+2*w,2)}")
    for w in range(2): a(f"v_pk_add_f32 {vr(G+2*w,2)}, {vr(G+2*w,2)}, {vr(G+4+2*w,2)}")
    a(f"v_pk_add_f32 {vr(G,2)}, {vr(G,2)}, {vr(G+16,2)}\nv_pk_add_f32 {vr(G,2)}, {vr(G,2)}, {vr(G+2,2)}")
    a(f"v_cvt_pk_bf16_f32 v5, v{G}, v{G+1}\nv_lshlrev_b32 v6, 16, v5\nv_and_b32 v7, 0xffff0000, v5")
    a(f"v_mul_f32 v5, v6, v6\nv_mul_f32 v5, v5, v6\nv_fma_f32 v5, s34, v5, v6\nv_mul_f32 v5, s35, v5\nv_exp_f32 v5, v5\nv_add_f32 v5, 1.0, v5\nv_rcp_f32 v5, v5\nv_mul_f32 v6, v6, v5")
    bf16r(6, 6, 5)
    a(f"v_mul_f32 v6, v6, v7\nv_cvt_pk_bf16_f32 v6, v6, v6\nds_write_b16 v4, v6 offset:{LH}\ns_waitcnt lgkmcnt(0)")
    a(f"L_Bh:\ns_barrier\nds_read_b128 v[4:7], v3 offset:{LH}"); stamp(4)
    for jp in range(4):
        a(f"s_waitcnt vmcnt({6-2*jp})")
        if jp == 3: stamp(6)
        for l in perm_pair(DN, T, jp): a(l)
    a("s_waitcnt lgkmcnt(0)")
    for e in range(8): a(mfma(ACC + 4 * e, 4, T + 4 * e, True))
    fold(G, ACC); tag(G, G, 2)
    a(f"global_store_dwordx4 v1, {vr(G)}, s[26:27] sc1"); stamp(7); a(END)
    a("L_LN:\nv_lshrrev_b32 v1, 4, v0\nv_mul_u32_u24 v1, 1152, v1\nv_and_b32 v3, 15, v0\nv_lshl_add_u32 v2, v3, 3, v1\nv_lshl_add_u32 v1, v3, 4, v1\ns_waitcnt lgkmcnt(0)")
    RW, F = 10, 30
    for t in range(4): a(f"global_load_dwordx4 {vr(RW+4*t)}, v1, s[4:5] offset:{256*t}")
    a(f"global_load_dwordx2 {vr(RW+16,2)}, v2, s[4:5] offset:1024")
    load_epoch()
    a(f"s_mov_b32 s33, {f2u(1.0/576):#x}\ns_waitcnt vmcnt(0)")
    for k in range(18): a(f"v_lshlrev_b32 v{F+2*k}, 16, v{RW+k}\nv_and_b32 v{F+2*k+1}, 0xffff0000, v{RW+k}")
    a(f"v_pk_add_f32 v[4:5], {vr(F,2)}, {vr(F+2,2)}\nv_pk_add_f32 v[6:7], {vr(F+4,2)}, {vr(F+6,2)}")
    for k in range(4, 18, 2): a(f"v_pk_add_f32 v[4:5], v[4:5], {vr(F+2*k,2)}\nv_pk_add_f32 v[6:7], v[6:7], {vr(F+2*k+2,2)}")
    def rowsum(r):
        for s in (8, 4, 2, 1): a(f"v_add_f32_dpp v{r}, v{r}, v{r} row_ror:{s} row_mask:0xf bank_mask:0xf")
    a("v_pk_add_f32 v[4:5], v[4:5], v[6:7]\nv_add_f32 v4, v4, v5"); rowsum(4)
    a("v_mul_f32 v4, s33, v4")
    for k in range(18):
        a(f"v_pk_add_f32 {vr(RW+2*(k&3),2)}, {vr(F+2*k,2)}, v[4:5] op_sel_hi:[1,0] neg_lo:[0,1] neg_hi:[0,1]")
        a(f"v_pk_mul_f32 v[6:7], {vr(RW,2)}, {vr(RW,2)}" if k == 0 else f"v_pk_fma_f32 v[6:7], {vr(RW+2*(k&3),2)}, {vr(RW+2*(k&3),2)}, v[6:7]")
    a("v_add_f32 v6, v6, v7"); rowsum(6)
    a("v_mul_f32 v6, s33, v6\nv_cvt_pk_bf16_f32 v5, v4, v6\nv_lshlrev_b32 v4, 16, v5\nv_and_b32 v6, 0xffff0000, v5")
    a(f"v_add_f32 v6, {f2u(1e-5):#x}, v6"); bf16r(6, 6, 5)
    a("v_sqrt_f32 v6, v6"); bf16r(6, 6, 5)
    a("v_rcp_f32 v6, v6")
    for k in range(18): a(f"v_pk_add_f32 {vr(F+2*k,2)}, {vr(F+2*k,2)}, v[4:5] op_sel_hi:[1,0] neg_lo:[0,1] neg_hi:[0,1]")
    for k in range(18): a(f"v_cvt_pk_bf16_f32 v{RW+k}, v{F+2*k}, v{F+2*k+1}")
    for k in range(18): a(f"v_lshlrev_b32 v{F+2*k}, 16, v{RW+k}\nv_and_b32 v{F+2*k+1}, 0xffff0000, v{RW+k}")
    for k in range(18): a(f"v_pk_mul_f32 {vr(F+2*k,2)}, {vr(F+2*k,2)}, v[6:7] op_sel_hi:[1,0]")
    for k in range(18): a(f"v_cvt_pk_bf16_f32 v{RW+k}, v{F+2*k}, v{F+2*k+1}")
    for t in range(4): a(f"ds_write_b128 v1, {vr(RW+4*t)} offset:{LX+256*t}")
    a(f"ds_write_b64 v2, {vr(RW+16,2)} offset:{LX+1024}\ns_waitcnt lgkmcnt(0)")
    stamp(1)
    a("s_cmp_ge_u32 s30, 25\ns_cbranch_scc1 L_C\ns_barrier"); a(END)
    a("L_C:\ns_sub_u32 s33, s30, 25\ns_cmp_ge_u32 s33, 3\ns_cselect_b32 s32, 1, 0\ns_mul_i32 s34, s32, 3\ns_sub_u32 s33, s33, s34\ns_lshl_b32 s34, s31, 1\ns_add_u32 s32, s32, s34")
    a("s_cmp_ge_u32 s3, 4\ns_cbranch_scc1 L_Cwo")
    a(f"s_mul_i32 s48, s33, {192*8192}\ns_lshl_b32 s34, s32, 9\ns_add_u32 s48, s48, s34\ns_lshl_b32 s34, s3, 7\ns_add_u32 s48, s48, s34")
    blk_voff(1, 8192, 2)
    a("s_waitcnt lgkmcnt(0)")
    srd(36, 10, 0, 576 * 8192)
    Wq = P["Wq"]; done = 0
    def cq_block(k):
        if k == 0: a("s_barrier")
        a(f"ds_read_b128 v[4:7], v3 offset:{LX+128*k}")
        block(G + 32 * k, T, ACC, 4, k == 0, pre="s_waitcnt lgkmcnt(0)")
    for n in range(24):
        if n >= Wq: a(f"s_waitcnt vmcnt({Wq-1})")
        a(f"buffer_load_dwordx4 {vr(G+4*n)}, v1, s[36:39], s48 offen nt")
        if n < 23: a(f"s_add_u32 s48, s48, {8192 if n % 8 != 7 else 57*8192}")
        if n == min(Wq, 24) - 1:
            load_epoch()
            aop_addr(3, 1152, 4)
            a("s_mul_i32 s34, s33, 384\nv_add_u32 v3, s34, v3")
            out_off(2, 1024, 4)
            a(f"s_mul_i32 s34, s32, 3\ns_add_u32 s34, s34, s33\ns_lshl_b32 s34, s34, 12\ns_lshl_b32 s35, s3, 8\ns_add_u32 s34, s34, s35\ns_add_u32 s34, s34, {WS_Q}\nv_add_u32 v2, s34, v2")
            consts_perm(); consts_tag(); consts_chk()
            a("s_waitcnt lgkmcnt(0)"); nonce()
        if n < 23 and n - Wq + 1 >= 8 * (done + 1): cq_block(done); done += 1
    if done == 0:
        a("s_waitcnt vmcnt(16)"); cq_block(0); done = 1
    a("s_barrier")
    for k in range(done, 3):
        a(f"s_waitcnt vmcnt({16-8*k})")
        if k == 2: stamp(2)
        cq_block(k)
    a("v_mov_b32 v1, s29")
    fold(G, ACC); tag(G, G, 1)
    a(f"global_store_dwordx4 v2, {vr(G)}, s[26:27] sc1"); stamp(3)
    a(f"s_setprio 3\ns_lshl_b32 s34, s32, 2\ns_add_u32 s34, s34, s3\ns_lshl_b32 s35, s34, 8\ns_add_u32 s35, s35, {WS_ST}\nv_lshrrev_b32 v3, 5, v0\nv_lshl_add_u32 v1, v3, 4, s35")
    a(f"s_lshl_b32 s35, s34, 11\ns_add_u32 s35, s35, {WS_O}\nv_lshl_add_u32 v2, v0, 4, s35")
    a(f"v_and_b32 v4, 15, v0\nv_lshlrev_b32 v4, 4, v4\nv_lshl_add_u32 v3, v3, 8, v4\nv_bfe_u32 v4, v0, 4, 1\nv_lshl_add_u32 v3, v4, 3, v3\ns_lshl_b32 s35, s3, 9\nv_add_u32 v3, s35, v3\ns_mov_b32 s62, {LOG2E:#x}")
    poll(["global_load_dwordx4 v[8:11], v1, s[26:27] sc1", "global_load_dwordx4 v[12:15], v1, s[26:27] offset:128 sc1"], [8, 12], 4)
    stamp(4)
    for r in (8, 9, 12, 13): a(f"v_and_b32 v{r}, 0xffffff00, v{r}")
    a("v_max_f32 v10, v8, v12\nv_sub_f32 v8, v8, v10\nv_sub_f32 v12, v12, v10\nv_mul_f32 v8, s62, v8\nv_mul_f32 v12, s62, v12\nv_exp_f32 v8, v8\nv_exp_f32 v12, v12")
    a("v_mul_f32 v9, v8, v9\nv_fmac_f32 v9, v12, v13\nv_rcp_f32 v9, v9\nv_mul_f32 v8, v8, v9\nv_mul_f32 v12, v12, v9")
    poll(["global_load_dwordx4 v[16:19], v2, s[26:27] sc1", "global_load_dwordx4 v[20:23], v2, s[26:27] offset:1024 sc1"], [16, 20], 4)
    stamp(5)
    untag(16); untag(20)
    a("v_pk_mul_f32 v[16:17], v[16:17], v[8:9] op_sel_hi:[1,0]\nv_pk_mul_f32 v[18:19], v[18:19], v[8:9] op_sel_hi:[1,0]")
    a("v_pk_fma_f32 v[16:17], v[20:21], v[12:13], v[16:17] op_sel_hi:[1,0,1]\nv_pk_fma_f32 v[18:19], v[22:23], v[12:13], v[18:19] op_sel_hi:[1,0,1]")
    a(f"v_cvt_pk_bf16_f32 v16, v16, v17\nv_cvt_pk_bf16_f32 v17, v18, v19\nds_write_b64 v3, v[16:17] offset:{LOB}\ns_waitcnt lgkmcnt(0)\ns_barrier"); a(END)
    a("L_Cwo:\ns_waitcnt lgkmcnt(0)"); load_epoch()
    a("s_sub_u32 s34, s3, 4\ns_cmp_ge_u32 s34, 3\ns_cselect_b32 s35, 1, 0\ns_mul_i32 s49, s35, 3\ns_sub_u32 s34, s34, s49")
    a("s_lshl_b32 s32, s32, 1\ns_add_u32 s32, s32, s35\ns_mul_i32 s33, s33, 3\ns_add_u32 s33, s33, s34")
    a(f"s_mul_i32 s48, s32, {128*1152}\ns_lshl_b32 s49, s33, 7\ns_add_u32 s48, s48, s49")
    srd(36, 12, 0, 4096 * 1152)
    blk_voff(2, 1152, 3)
    aop_addr(3, 512, 4)
    a("s_lshl_b32 s35, s35, 8\nv_add_u32 v3, s35, v3")
    out_off(1, 2304, 4)
    a(f"s_mul_i32 s34, s32, 9216\ns_lshl_b32 s35, s33, 8\ns_add_u32 s34, s34, s35\ns_add_u32 s34, s34, {WS_F+72*9216}\nv_add_u32 v1, s34, v1")
    consts_perm(); consts_tag()
    a("s_waitcnt lgkmcnt(0)"); nonce()
    a("v_mov_b32 v4, s29\ns_barrier\ns_barrier"); stamp(2)
    Wo = P["Wo"]; done = 0
    for n in range(16):
        if n >= Wo[n]: a(f"s_waitcnt vmcnt({Wo[n]-1})")
        a(f"buffer_load_dwordx4 {vr(40+4*n)}, v2, s[36:39], s48 offen offset:{1152*(n&3)} nt")
        if n & 3 == 3 and n < 15: a(f"s_add_u32 s48, s48, {4608 if n != 7 else 60*1152}")
    for jp in range(8):
        a(f"s_waitcnt vmcnt({14-2*jp})")
        if jp == 7: stamp(3)
        for l in perm_pair(40 + 32 * (jp >> 2), 104 + 32 * (jp >> 2), jp & 3): a(l)
    a(f"s_barrier\nds_read_b128 v[40:43], v3 offset:{LOB}\nds_read_b128 v[44:47], v3 offset:{LOB+128}"); stamp(6)
    a("s_waitcnt lgkmcnt(1)" if not P["stamps"] else "s_waitcnt lgkmcnt(0)")
    for e in range(8): a(mfma(ACC + 4 * e, 40, 104 + 4 * e, True))
    a("s_waitcnt lgkmcnt(0)")
    for e in range(8): a(mfma(ACC + 4 * e, 44, 136 + 4 * e, False))
    fold(48, ACC); tag(48, 48, 4)
    a("global_store_dwordx4 v1, v[48:51], s[26:27] sc1"); stamp(7)
    if P["stamps"]:
        a("L_end:\ns_mov_b64 exec, 1\ns_waitcnt vmcnt(0)"); stamp(10)
        a("s_waitcnt lgkmcnt(0)\ns_mov_b32 s86, s30")
        for i in range(12): a(f"v_mov_b32 v{8+i}, s{64+2*i}")
        a(f"s_mul_i32 s32, s2, 10\ns_add_u32 s32, s32, s3\ns_lshl_b32 s32, s32, 6\ns_add_u32 s32, s32, {WS_STAMP}\nv_mov_b32 v6, s32")
        for i in range(3): a(f"global_store_dwordx4 v6, {vr(8+4*i)}, s[26:27] offset:{16*i}")
    a("L_exit:\nL_last:\ns_endpgm")
    body = hazard.fix(a.text())
    hdr = header(["Fused decode block: layernorm -> {GQA window attention -> wo} * silu(GeGLU FFN) + x, one launch.",
                  "Generated by dev/gen_k1.py (hand-written generator).",
                  f"@launch grid=(248,1,1) block=(640,1,1) lds={LDS_BYTES}"])
    return hdr + body + RODATA + descriptor(kn, 168, 96 if P["stamps"] else 64)

if __name__ == "__main__":
    open("k1.s", "w").write(gen())
    open("k1_st.s", "w").write(gen(stamps=True))
```
